```python
import torch

def _softmax(x, axis=-1):
    return torch.softmax(x, dim=axis)
def _gelu(x):
    return torch.nn.functional.gelu(x, approximate="tanh")
def _silu(x):
    return torch.nn.functional.silu(x)
def _sigmoid(x):
    return torch.sigmoid(x)
def _layernorm(x, axis=-1, eps=1e-5):
    m = x.mean(dim=axis, keepdim=True)
    v = x.var(dim=axis, keepdim=True, unbiased=False)
    return (x - m) / torch.sqrt(v + eps)
def _scatter_add(tgt, idx, src, axis=0):
    return tgt.clone().index_add_(axis, idx, src)
def _segment_sum(src, seg, n):
    out = torch.zeros((n,) + src.shape[1:], dtype=src.dtype)
    return out.index_add_(0, seg, src)
def _pad(x, pw):
    flat = tuple(v for pair in reversed(pw) for v in pair)
    return torch.nn.functional.pad(x, flat)

kernel_name = 'parallel_sum__linear_attn_block__dense_activation_squared_relu__prompt'

def setup_inputs():

    _w = (lambda a: (lambda t: t.to(torch.bfloat16) if t.is_floating_point() else t)(torch.as_tensor(a)))
    def _A_setup():
        B, S, D = 1, 2048, 576
        return {
            "x": _w((lambda *s: torch.randn(*s, dtype=torch.bfloat16) * 0.05)(B, S, D)),
            "wqkv": _w((lambda *s: torch.randn(*s, dtype=torch.bfloat16) * 0.4)(D, 3 * D)),
            "wo": _w((lambda *s: torch.randn(*s, dtype=torch.bfloat16) * 0.4)(D, D)),
        }
    _A_in = _A_setup()

    def _B_setup():
        B, S, D, F = 1, 2048, 576, 4608
        return {
            "x": _w((lambda *s: torch.randn(*s, dtype=torch.bfloat16) * 0.05)(B, S, D)),
            "w1": _w((lambda *s: torch.randn(*s, dtype=torch.bfloat16) * 0.05)(D, F)),
            "b1": _w((lambda *s: torch.randn(*s, dtype=torch.bfloat16) * 0.2)(F)),
            "w2": _w((lambda *s: torch.randn(*s, dtype=torch.bfloat16) * 0.05)(F, D)),
            "b2": _w((lambda *s: torch.randn(*s, dtype=torch.bfloat16) * 1.6)(D)),
        }
    _B_in = _B_setup()

    return {
        "A_x": _A_in["x"],
        "A_wqkv": _A_in["wqkv"],
        "A_wo": _A_in["wo"],
        "B_x": _B_in["x"],
        "B_w1": _B_in["w1"],
        "B_b1": _B_in["b1"],
        "B_w2": _B_in["w2"],
        "B_b2": _B_in["b2"],
    }

def reference(A_x, A_wqkv, A_wo, B_x, B_w1, B_b1, B_w2, B_b2):
    def _A_ref(x, wqkv, wo):
        B, S, D = x.shape
        H = 32; Dh = D // H
        qkv = (lambda x, *d: x.permute(*d))((x @ wqkv).reshape(B, S, 3, H, Dh), 2, 0, 3, 1, 4)
        q, k, v = qkv[0], qkv[1], qkv[2]
        phi = lambda t: torch.where(t > 0, t + 1, torch.exp(t)) + 1e-6
        pq, pk = phi(q), phi(k)
        kv = torch.einsum("bhsd,bhse->bhde", pk, v)
        z = torch.einsum("bhsd->bhd", pk)
        num = torch.einsum("bhqd,bhde->bhqe", pq, kv)
        den = torch.einsum("bhqd,bhd->bhq", pq, z)[..., None] + 1e-6
        o = num / den
        return (lambda x, *d: x.permute(*d))(o, 0, 2, 1, 3).reshape(B, S, D) @ wo

    def _B_ref(x, w1, b1, w2, b2):
        h = torch.einsum("bsd,df->bsf", x, w1) + b1
        zero = torch.zeros_like(h)
        r = torch.where(h > zero, h, zero)
        h = r * r
        out = torch.einsum("bsf,fd->bsd", h, w2) + b2
        return out

    x = A_x
    xn = _layernorm(x, axis=-1)
    return x + _A_ref(xn, A_wqkv, A_wo) + _B_ref(xn, B_w1, B_b1, B_w2, B_b2)
```

```python
import re

def R(kind, lo, n=1):
    return [(kind, lo + i) for i in range(n)]

def rs(kind, lo, n=1):
    return f"{kind}{lo}" if n == 1 else f"{kind}[{lo}:{lo+n-1}]"

_reg_re = re.compile(r'(?<![\w.])([vas])(?:(\d+)|\[(\d+):(\d+)\])(?![\w])')

def regs_of(tok):
    out = []
    for m in _reg_re.finditer(tok):
        k = m.group(1)
        if m.group(2) is not None: out.append((k, int(m.group(2))))
        else: out += [(k, i) for i in range(int(m.group(3)), int(m.group(4)) + 1)]
    if re.search(r'\bvcc\b', tok): out += [('s', 'vcc')]
    if re.search(r'\bm0\b', tok): out += [('s', 'm0')]
    if re.search(r'\bexec\b', tok): out += [('s', 'exec')]
    return out

def split_ops(s):
    out, depth, cur = [], 0, ''
    for ch in s:
        if ch in '[(': depth += 1
        if ch in '])': depth -= 1
        if ch == ',' and depth == 0:
            out.append(cur.strip()); cur = ''
        else: cur += ch
    if cur.strip(): out.append(cur.strip())
    return out

TRANS = ('v_exp_f32', 'v_rcp_f32', 'v_rsq_f32', 'v_sqrt_f32', 'v_log_f32')

class Op:
    __slots__ = ('text', 'mn', 'kind', 'defs', 'uses', 'srcC', 'note', 'tok')
    def __init__(self, text, note=''):
        self.text = text.strip(); self.note = note; self.tok = None; self.srcC = []
        parts = self.text.split(None, 1)
        mn = self.mn = parts[0]
        ops = split_ops(parts[1]) if len(parts) > 1 else []
        defs, uses = [], []
        if mn.endswith(':') or mn.startswith('.') or mn.startswith(';'):
            self.kind = 'label'
        elif mn.startswith('v_mfma'):
            self.kind = 'mfma'; defs = regs_of(ops[0]); uses = regs_of(ops[1]) + regs_of(ops[2]) + regs_of(ops[3]); self.srcC = regs_of(ops[3])
        elif mn.startswith('ds_'):
            self.kind = 'ds'
            if mn.startswith('ds_read'):
                defs = regs_of(ops[0]); uses = regs_of(ops[1].split()[0])
            else:
                uses = [r for o in ops for r in regs_of(o.split()[0])]
        elif mn.startswith('buffer_') or mn.startswith('global_'):
            self.kind = 'vmem'
            allr = [regs_of(o.split()[0]) for o in ops]
            lds = re.search(r'\blds\b', self.text) is not None
            if 'load' in mn and not lds:
                defs = allr[0]; uses = [r for x in allr[1:] for r in x]
            else:
                uses = [r for x in allr for r in x]
                if lds: uses.append(('s', 'm0'))
                if 'atomic' in mn and re.search(r'\bsc0\b', self.text): defs = allr[0]
        elif mn in ('s_waitcnt', 's_barrier', 's_nop', 's_endpgm', 's_sleep', 's_setprio') or mn.startswith('s_cbranch') or mn == 's_branch':
            self.kind = 'ctl'
        elif mn.startswith('s_load') or mn.startswith('s_memtime') or mn.startswith('s_memrealtime'):
            self.kind = 'smem'; defs = regs_of(ops[0]); uses = [r for o in ops[1:] for r in regs_of(o)]
        elif mn.startswith('s_cmp'):
            self.kind = 'salu'; uses = [r for o in ops for r in regs_of(o)]
        elif mn.startswith('s_'):
            self.kind = 'salu'; defs = regs_of(ops[0]); uses = [r for o in ops[1:] for r in regs_of(o)]
        elif mn.startswith('v_'):
            self.kind = 'valu'
            defs = regs_of(ops[0]); uses = [r for o in ops[1:] for r in regs_of(o.split(' op_sel')[0])]
            if mn.startswith('v_permlane') and 'swap' in mn:
                defs = regs_of(ops[0]) + regs_of(ops[1]); uses = list(defs)
            if mn.startswith('v_fmac') or mn.startswith('v_dot2c'): uses += defs
        else:
            raise ValueError("unknown op " + text)
        self.defs, self.uses = defs, uses
    @property
    def cost(self):
        if self.kind == 'label': return 0
        if self.mn.startswith(TRANS): return 2
        return 1

class Prog:
    def __init__(self):
        self.ops = []
        self.n_lgkm = 0; self.done_lgkm = 0
        self.n_vm = 0; self.done_vm = 0
        self.pend = {}
        self.rd_pend = {}
    def raw(self, text, note=''):
        op = Op(text, note); self.ops.append(op); return op
    def wait(self, lg=None, vm=None):
        parts = []
        if vm is not None and vm > self.done_vm:
            n = min(self.n_vm - vm, 63); parts.append(f"vmcnt({n})"); self.done_vm = self.n_vm - n
        if lg is not None and lg > self.done_lgkm:
            n = min(self.n_lgkm - lg, 15); parts.append(f"lgkmcnt({n})"); self.done_lgkm = self.n_lgkm - n
        if parts: self.raw("s_waitcnt " + " ".join(parts))
        return bool(parts)
    def need(self, regs, extra_lg=None):
        lg = vm = None
        for r in regs:
            p = self.pend.get(r)
            if p is None: continue
            if p[0] == 'l': lg = max(lg or 0, p[1])
            else: vm = max(vm or 0, p[1])
        if lg is not None and lg > self.done_lgkm and extra_lg is not None: lg = max(lg, extra_lg)
        return self.wait(lg, vm)
    def emit(self, text, note='', extra_lg=None):
        op = Op(text, note)
        self.need(op.uses + op.defs, extra_lg)
        for r in op.defs: self.pend.pop(r, None)
        if op.kind == 'ds':
            self.n_lgkm += 1; op.tok = self.n_lgkm
            for r in op.defs: self.pend[r] = ('l', op.tok)
        elif op.kind == 'vmem':
            self.n_vm += 1; op.tok = self.n_vm
            for r in op.defs: self.pend[r] = ('v', op.tok)
        self.ops.append(op)
        return op
    def hazards(self):
        out = []
        def states_since(pred, limit):
            n = 0
            for o in reversed(out):
                if o.kind == 'label': continue
                if pred(o): return n
                n += (int(o.text.split()[1]) + 1) if o.mn == 's_nop' else 1
                if n >= limit: return None
            return None
        nins = 0
        for op in self.ops:
            if op.kind in ('label',):
                out.append(op); continue
            U, D = set(op.uses), set(op.defs)
            reqs = []
            def passes(o): return 8 if '32x32x16' in o.mn else 4
            if op.kind == 'mfma':
                reqs.append((lambda o: o.kind == 'valu' and set(o.defs) & U, 2))
                AB = set(op.uses[:len(op.uses) - len(op.srcC)]); C = set(op.srcC)
                for ps, n_ab, n_c in ((8, 12, 10), (4, 8, 6)):
                    reqs.append((lambda o, ps=ps: o.kind == 'mfma' and passes(o) == ps and set(o.defs) & AB, n_ab))
                    reqs.append((lambda o, ps=ps: o.kind == 'mfma' and passes(o) == ps and (set(o.defs) & (C | D)) and not (o.defs == op.srcC and o.mn == op.mn), n_c))
            if op.kind in ('valu', 'ds', 'vmem'):
                for ps, n, nw in ((8, 12, 7), (4, 8, 3)):
                    reqs.append((lambda o, ps=ps: o.kind == 'mfma' and passes(o) == ps and set(o.defs) & (U | D), n))
                    reqs.append((lambda o, ps=ps: o.kind == 'mfma' and passes(o) == ps and set(o.srcC) & D, nw))
            if op.kind == 'valu':
                reqs.append((lambda o: o.mn.startswith(TRANS) and set(o.defs) & U, 1))
                sU = {r for r in U if r[0] == 's'}
                if sU: reqs.append((lambda o: o.kind == 'valu' and set(o.defs) & sU, 2))
                if op.mn.startswith('v_readfirstlane') or op.mn.startswith('v_readlane'):
                    reqs.append((lambda o: o.kind == 'valu' and set(o.defs) & U, 1))
                if op.mn.startswith('v_permlane') or 'dpp' in op.mn or 'row_' in op.text:
                    reqs.append((lambda o: o.kind == 'valu' and set(o.defs) & U, 2))
                reqs.append((lambda o: o.kind == 'vmem' and 'store' in o.mn and ('x4' in o.mn or 'x3' in o.mn) and set(o.uses) & D, 2))
                reqs.append((lambda o: o.mn.startswith('v_dot') and set(o.defs) & (U | D) and not (o.mn == op.mn and set(o.defs) == D), 3))
            if op.kind in ('ds', 'vmem') and D:
                reqs.append((lambda o: o.kind == 'vmem' and 'store' in o.mn and set(o.uses) & D, 1))
            if op.kind == 'vmem':
                sU = {r for r in U if r[0] == 's'}
                reqs.append((lambda o: o.kind == 'valu' and set(o.defs) & sU, 5))
                if ('s', 'm0') in U: reqs.append((lambda o: o.kind == 'salu' and ('s', 'm0') in o.defs, 1))
            if op.kind == 'salu' or op.mn.startswith('s_cbranch_vcc'):
                sU = {r for r in U if r[0] == 's'} | ({('s', 'vcc')} if op.mn.startswith('s_cbranch_vcc') else set())
                if sU: reqs.append((lambda o: o.kind == 'valu' and set(o.defs) & sU, 5))
            short = 0
            for pred, n in reqs:
                s = states_since(pred, n)
                if s is not None: short = max(short, n - s)
            if short:
                out.append(Op(f"s_nop {short-1}", 'hazard')); nins += short
            out.append(op)
        self.ops = out
        return nins
    def text(self):
        L = []
        for o in self.ops:
            t = o.text if o.kind == 'label' else '  ' + o.text
            L.append(t + (f"  ; {o.note}" if o.note else ''))
        return "\n".join(L)
```

```python
import sys, argparse
from asmlib import *

NAME = "parallel_sum__linear_attn_block__dense_activation_squared_relu__prompt"
ap = argparse.ArgumentParser()
ap.add_argument("--b", type=int, default=4)
ap.add_argument("--budget", type=float, default=5.5)
ap.add_argument("--lead", type=int, default=22)
ap.add_argument("--gap", type=int, default=3)
ap.add_argument("--stamps", action="store_true")
ap.add_argument("--stflags", default="sc1")
ap.add_argument("--ldflags", default="")
ap.add_argument("--norot", action="store_true")
ap.add_argument("--kvslot", type=int, default=62)
ap.add_argument("--kvload", type=int, default=36)
ap.add_argument("--k1only", action="store_true")
args = ap.parse_args()

S_TOK, D, F = 2048, 576, 4608
PSTRIDE = S_TOK * D * 2
KVP = 0x2800000
KVT = KVP + 16 * 4 * 16 * 1024
STAMP = 0x2A00000
WS_BYTES = 0x3000000
OOB = 0x70000000
IMG_A, IMG_B, B1TAB = 0, 5120, 12288
FIN, WOT = IMG_A, IMG_B
QBASE, QSIZE, RING = 16384, 36864, 36
vP = [1, 2, 3]
vW1p, vW1s, vKV, vQD, vW2, vWOt, vL16, vB1, vScale, vShift, vStore, vImg, vImgA, vImgB = range(4, 18)
TMP = list(range(18, 31)); vStamp = 31
S = [32 + 16 * i for i in range(5)]
X = 112
RINGF = 8
H = 32; IDA = 104
AA = [128 + 16 * i for i in range(8)]
sJ, sT, sWv, sRot = 4, 5, 6, 7
dX, dQKV, dW1, dW2, dWO, dWS, dB1, dDBG = 8, 12, 16, 20, 24, 28, 32, 36
sW, sMASK, sLOG2E, sEPS, mLT18 = 40, 41, 42, 43, 44
sA, sB, sC, sD = 46, 47, 48, 49
TQ, T1 = 50, 68
sKVPUB, sTLPUB, sKVLD, sTLLD, sSTORE, sWO, sT20, sT2B = range(86, 94)
sSTMP = 94
sE, sF_, sG, sCNT = 98, 99, 100, 101
T2 = [sT20] + [50 + i for i in range(8)]
mMIX, mK1, mMIX1, mTL0, mTL1 = 58, 60, 62, 64, 66
def srd(d): return f"s[{d}:{d+3}]"
def sp(d): return f"s[{d}:{d+1}]"

P = Prog()
E = P.emit
nstamp = [0]
stamp_pending = []
def stamp_now():
    if not args.stamps: return
    flush_stamp()
    P.raw(f"s_memtime {sp(sSTMP)}")
    stamp_pending.append(nstamp[0]); nstamp[0] += 1
def flush_stamp():
    while stamp_pending:
        P.raw(f"v_writelane_b32 v{vStamp}, s{sSTMP}, {stamp_pending.pop()}")

P.raw(f".globl k1_kernel"); P.raw(".p2align 8"); P.raw(".type k1_kernel,@function"); P.raw("k1_kernel:")
if args.stamps:
    P.raw(f"s_memrealtime {sp(96)}")
    P.raw(f"s_memtime {sp(sSTMP)}"); stamp_pending.append(0); nstamp[0] = 1
E("s_cmp_ge_u32 s2, 256"); E("s_cbranch_scc1 K1_END")
for d, off in ((dX, 0), (dQKV, 8), (dW1, 32), (dB1, 40), (dWS, 80), (dW2, 48), (dWO, 16), (dDBG, 72)):
    E(f"s_load_dwordx2 {sp(d)}, s[0:1], {off}")
lb = {2: 1, 4: 2, 8: 3, 16: 4}[args.b]
E(f"s_and_b32 s{sA}, s2, 7"); E(f"s_lshr_b32 s{sB}, s2, 3")
E(f"s_and_b32 s{sJ}, s{sA}, {16//args.b - 1}"); E(f"s_lshl_b32 s{sJ}, s{sJ}, {lb}")
E(f"s_and_b32 s{sC}, s{sB}, {args.b - 1}"); E(f"s_add_u32 s{sJ}, s{sJ}, s{sC}")
E(f"s_lshr_b32 s{sT}, s{sA}, {4 - lb}"); E(f"s_mul_i32 s{sT}, s{sT}, {32//args.b}")
E(f"s_lshr_b32 s{sD}, s{sB}, {lb}"); E(f"s_add_u32 s{sT}, s{sT}, s{sD}")
if args.norot:
    E(f"s_mov_b32 s{sRot}, 0")
else:
    mul = {2: 4, 4: 2, 8: 1, 16: 1}[args.b]
    E(f"s_mul_i32 s{sRot}, s{sC}, {mul}"); E(f"s_add_u32 s{sRot}, s{sRot}, s{sD}")
    for _ in range(2):
        E(f"s_sub_u32 s{sA}, s{sRot}, 9"); E(f"s_cmp_ge_u32 s{sRot}, 9"); E(f"s_cselect_b32 s{sRot}, s{sA}, s{sRot}")
tl, tw_, ta, tb, tc, td = 32, 33, 34, 35, 36, 37
xv = [40, 41, 42, 43]; xr = [44, 45, 46, 47]
E(f"v_and_b32 v{tl}, 63, v0"); E(f"v_lshrrev_b32 v{tw_}, 6, v0")
E(f"v_readfirstlane_b32 s{sWv}, v{tw_}")
E(f"v_lshrrev_b32 v{ta}, 3, v{tl}")
E(f"v_lshl_add_u32 v{tb}, v{tw_}, 5, v{ta}")
E(f"v_mul_u32_u24 v{tb}, 1152, v{tb}")
E(f"v_lshrrev_b32 v{ta}, 1, v{ta}")
E(f"v_and_b32 v{tc}, 7, v{tl}")
E(f"v_xor_b32 v{tc}, v{tc}, v{ta}")
E(f"v_xor_b32 v{td}, 4, v{tc}")
E(f"v_lshl_add_u32 v{xv[0]}, v{tc}, 4, v{tb}")
E(f"v_lshl_add_u32 v{xv[1]}, v{td}, 4, v{tb}")
E(f"v_add_u32 v{xv[2]}, {2*8192}, v{xv[0]}")
E(f"v_add_u32 v{xv[3]}, {3*8192}, v{xv[1]}")
E(f"v_add_u32 v{xv[1]}, {8192}, v{xv[1]}")
E(f"s_mul_i32 s{sW}, s{sWv}, {QSIZE}"); E(f"s_add_u32 s{sW}, s{sW}, {QBASE}")
E(f"s_mul_i32 s{sE}, s{sT}, {128*1152}")
E(f"s_mov_b32 s{dX+2}, {S_TOK*D*2}"); E(f"s_mov_b32 s{dX+3}, 0x20000")
E(f"s_mov_b32 s{sG}, s{sRot}")
P.raw("s_waitcnt lgkmcnt(0)")
flush_stamp()
xtok = []
def x_block(g):
    E(f"s_add_u32 m0, s{sW}, {g*4096}")
    E(f"s_lshl_b32 s{sF_}, s{sG}, 7"); E(f"s_add_u32 s{sF_}, s{sF_}, s{sE}")
    for i in range(4):
        o = E(f"buffer_load_dwordx4 v{xv[i]}, {srd(dX)}, s{sF_} offen offset:{i*1024} lds")
    xtok.append(o.tok)
    E(f"s_mul_i32 s{T1+2*g}, s{sG}, {64*9216}"); E(f"s_add_u32 s{T1+2*g+1}, s{T1+2*g}, {4*9216}")
    E(f"s_mul_i32 s{TQ+2*g}, s{sG}, {64*3456}"); E(f"s_add_u32 s{TQ+2*g+1}, s{TQ+2*g}, {4*3456}")
    E(f"s_add_u32 s{sG}, s{sG}, 1"); E(f"s_cmp_eq_u32 s{sG}, 9"); E(f"s_cselect_b32 s{sG}, 0, s{sG}")
XPRE = 5
for g in range(XPRE): x_block(g)
stamp_now()
for d, n in ((dQKV, D*3*D*2), (dW1, D*F*2), (dW2, D*F*2), (dWO, D*D*2), (dWS, WS_BYTES), (dB1, F*2), (dDBG, 256)):
    E(f"s_mov_b32 s{d+2}, {n}"); E(f"s_mov_b32 s{d+3}, 0x20000")
tb1 = 48
E(f"s_lshl_b32 s{sA}, s{sJ}, 6"); E(f"s_add_u32 s{sA}, s{sA}, 8192")
E(f"s_lshl_b32 s{sB}, s{sJ}, 9"); E(f"s_sub_u32 s{sB}, s{sB}, 64")
E(f"v_lshl_add_u32 v{ta}, v0, 2, s{sA}"); E(f"v_lshl_add_u32 v{tb}, v0, 2, s{sB}")
E(f"v_cmp_gt_u32 vcc, 16, v0"); E(f"v_cndmask_b32 v{ta}, v{tb}, v{ta}, vcc")
E(f"buffer_load_dword v{tb1}, v{ta}, {srd(dB1)}, 0 offen")
E(f"s_mov_b32 s{sMASK}, 0xffff0000"); E(f"s_mov_b32 s{sLOG2E}, 0x3fb8aa3b"); E(f"s_mov_b32 s{sEPS}, 0x358637bd")
E(f"s_mov_b32 s{mLT18}, 0x3ffff"); E(f"s_mov_b32 s{mLT18+1}, 0x3ffff")
fT, fhh, fr, fc, fn = 50, 51, 52, 53, 54
E(f"v_lshrrev_b32 v{fT}, 5, v{tl}"); E(f"v_bfe_u32 v{fhh}, v{tl}, 4, 1"); E(f"v_bfe_u32 v{fr}, v{tl}, 2, 2"); E(f"v_and_b32 v{fc}, 3, v{tl}")
E(f"v_and_b32 v{fn}, 31, v{tl}")
E(f"v_lshlrev_b32 v{vL16}, 4, v{tl}")
E(f"v_bfe_u32 v{ta}, v{fn}, 1, 3"); E(f"v_xor_b32 v{ta}, v{ta}, v{fT}")
E(f"v_lshl_add_u32 v{tb}, v{fn}, 7, s{sW}")
for i in range(4):
    E(f"v_xor_b32 v{tc}, {2*i}, v{ta}"); E(f"v_lshl_add_u32 v{xr[i]}, v{tc}, 4, v{tb}")
E(f"v_lshlrev_b32 v{vP[0]}, 8, v{fT}"); E(f"v_lshl_add_u32 v{vP[0]}, v{fr}, 6, v{vP[0]}")
E(f"v_lshl_add_u32 v{vP[0]}, v{fhh}, 5, v{vP[0]}"); E(f"v_lshl_add_u32 v{vP[0]}, v{fc}, 3, v{vP[0]}")
E(f"v_add_u32 v{vP[1]}, 0x10000, v{vP[0]}"); E(f"v_add_u32 v{vP[2]}, 0x20000, v{vP[0]}")
row16, colTc, c16 = 55, 56, 57
E(f"v_lshl_add_u32 v{row16}, v{tw_}, 1, v{fhh}"); E(f"v_lshl_add_u32 v{row16}, v{row16}, 3, v{fr}")
E(f"v_lshlrev_b32 v{c16}, 4, v{fc}"); E(f"v_lshl_add_u32 v{colTc}, v{fT}, 6, v{c16}")
E(f"s_lshl_b32 s{sB}, s{sJ}, 9")
E(f"v_mul_u32_u24 v{ta}, 9216, v{row16}"); E(f"v_add3_u32 v{vW1p}, v{ta}, v{colTc}, s{sB}")
E(f"v_lshl_add_u32 v{tb}, v{fT}, 2, v{row16}"); E(f"v_mul_u32_u24 v{tb}, 9216, v{tb}"); E(f"v_add3_u32 v{vW1s}, v{tb}, v{c16}, s{sA}")
E(f"s_mul_i32 s{sC}, s{sJ}, 72")
E(f"v_mul_u32_u24 v{ta}, 3456, v{row16}"); E(f"v_add_u32 v{ta}, s{sC}, v{ta}")
E(f"v_mul_u32_u24 v{tb}, 1152, v{fT}"); E(f"v_add3_u32 v{vKV}, v{ta}, v{tb}, v{c16}"); E(f"v_add_u32 v{vKV}, 1152, v{vKV}")
E(f"v_sub_u32 v{tb}, 2, v{fc}"); E(f"v_max_i32 v{tb}, 0, v{tb}"); E(f"v_mul_u32_u24 v{tb}, 1152, v{tb}"); E(f"v_add_u32 v{tb}, 64, v{tb}")
E(f"v_mov_b32 v{tc}, {OOB}"); E(f"v_cmp_eq_u32 vcc, 2, v{fc}"); E(f"v_cndmask_b32 v{tb}, v{tb}, v{tc}, vcc")
E(f"v_cmp_eq_u32 vcc, 0, v{fT}"); E(f"v_cndmask_b32 v{tb}, v{tb}, v{c16}, vcc"); E(f"v_add_u32 v{vQD}, v{ta}, v{tb}")
E(f"v_lshl_add_u32 v{ta}, v{tw_}, 1, v{fhh}"); E(f"v_lshl_add_u32 v{ta}, v{ta}, 2, v{fr}")
E(f"v_mul_u32_u24 v{ta}, 1152, v{ta}"); E(f"v_add_u32 v{vW2}, v{ta}, v{colTc}")
E(f"v_lshrrev_b32 v{ta}, 4, v{tl}"); E(f"v_lshl_add_u32 v{ta}, v{ta}, 6, v{c16}"); E(f"v_mul_u32_u24 v{tb}, 1152, v{fr}"); E(f"v_add_u32 v{vWOt}, v{ta}, v{tb}")
E(f"v_lshlrev_b32 v{vB1}, 4, v{fT}"); E(f"v_add_u32 v{vB1}, {B1TAB}, v{vB1}")
E(f"s_lshl_b32 s{sD}, s{sT}, 2"); E(f"s_add_u32 s{sD}, s{sD}, s{sWv}"); E(f"s_mul_i32 s{sD}, s{sD}, 36864")
E(f"v_add_u32 v{vStore}, s{sD}, v{vL16}")
E(f"s_mul_i32 s{sSTORE}, s{sJ}, {PSTRIDE}")
E(f"s_lshr_b32 s{sD}, s{sWv}, 1"); E(f"s_mul_i32 s{sD}, s{sD}, 5120")
E(f"v_add_u32 v{vImg}, s{sD}, v{vL16}")
E(f"v_lshl_add_u32 v{vImgA}, v{fT}, 11, v{vImg}")
E(f"v_xor_b32 v{ta}, 1, v{fT}"); E(f"v_mul_u32_u24 v{ta}, 2560, v{ta}"); E(f"v_add_u32 v{vImgB}, v{ta}, v{vImg}")
E(f"s_lshl_b32 s{sD}, s{sJ}, 2"); E(f"s_add_u32 s{sD}, s{sD}, s{sWv}"); E(f"s_lshl_b32 s{sD}, s{sD}, 14"); E(f"s_add_u32 s{sKVLD}, s{sD}, {KVP}")
E(f"s_lshl_b32 s{sD}, s{sT}, 10"); E(f"s_add_u32 s{sKVPUB}, s{sKVLD}, s{sD}")
E(f"s_lshl_b32 s{sD}, s{sJ}, 13"); E(f"s_add_u32 s{sTLLD}, s{sD}, {KVT}")
E(f"s_lshl_b32 s{sD}, s{sT}, 9"); E(f"s_add_u32 s{sTLPUB}, s{sTLLD}, s{sD}")
E(f"s_cmp_eq_u32 s{sWv}, 0"); E(f"s_cselect_b32 s{sTLPUB}, s{sTLPUB}, {OOB}")
E(f"s_mul_i32 s{sWO}, s{sJ}, {36*1152}")
E(f"s_mul_i32 s{sT20}, s{sJ}, {32*1152}"); E(f"s_add_u32 s{sT20}, s{sT20}, {4096*1152}")
E(f"s_mul_i32 s{sT2B}, s{sJ}, {256*1152}")
z = 60
for i in range(4): E(f"v_mov_b32 v{z+i}, 0")
E(f"v_lshlrev_b32 v{ta}, 4, v0")
for i in range(3): E(f"ds_write_b128 v{ta}, v[{z}:{z+3}] offset:{i*4096}")
sn = 96
for i in range(4): E(f"v_mov_b32 v{sn+i}, -1")
lo16 = 100
E(f"v_lshlrev_b32 v{lo16}, 24, v{fT}"); E(f"v_lshl_add_u32 v{lo16}, v{lo16}, 6, v{vL16}")
E(f"v_lshlrev_b32 v{ta}, 2, v{fT}"); E(f"v_sub_u32 v{ta}, v{fn}, v{ta}"); E(f"v_ashrrev_i32 v{ta}, 1, v{ta}")
E(f"v_and_b32 v{tb}, 1, v{fn}"); E(f"v_lshlrev_b32 v{tb}, 4, v{tb}"); E(f"v_mov_b32 v{tc}, 0x3f80"); E(f"v_lshlrev_b32 v{tb}, v{tb}, v{tc}")
for s_ in range(2):
    for p in range(4):
        base = 16 * s_ + 8 * (p >> 1) + 2 * (p & 1)
        E(f"v_cmp_eq_u32 vcc, {base//2}, v{ta}"); E(f"v_cndmask_b32 v{tc}, 0, v{tb}, vcc"); E(f"v_accvgpr_write_b32 a{IDA+4*s_+p}, v{tc}")
E(f"v_lshrrev_b32 v{ta}, 1, v{fn}"); E(f"v_cmp_eq_u32 vcc, 8, v{ta}"); E(f"v_cndmask_b32 v{S[2]}, 0, 1.0, vcc")
for i in range(1, 16): E(f"v_mov_b32 v{S[2]+i}, v{S[2]}")
acc = [104, 105, 106, 107]
for a in acc: E(f"v_mov_b32 v{a}, 0")
E(f"s_mov_b32 s{sD}, 0x3f803f80")

units = []
def dma(voff, d, soff, io=0):
    return lambda pos: [f"s_add_u32 m0, s{sW}, {pos*1024 - io}",
                        f"buffer_load_dwordx4 v{voff}, {srd(d)}, s{soff} offen{' offset:%d' % io if io else ''} lds"]
slab_id = [0]
def add_unit(fn, after=None):
    units.append(dict(dma=fn, slab=slab_id[0], idx=len(units), tok=None, nread=0, last=0, after=after)); return units[-1]
def end_slab(): slab_id[0] += 1
back = []
def tile(kind, base): return rs(kind, base, 16)
def slot(acc_k, acc_b, first, wfrag, other, w_is_a, name=None, cinit=False):
    back.append(dict(acc=(acc_k, acc_b), first=first, frag=wfrag, other=other, w_is_a=w_is_a, name=name, cinit=cinit))
def slot_raw(text, name=None): back.append(dict(raw=text, frag=None, name=name))
Xf = lambda s: rs('v', X + 4 * s, 4)
for u in range(9):
    kva = add_unit(dma(vKV, dQKV, TQ + 2*u)); kvb = add_unit(dma(vKV, dQKV, TQ + 2*u + 1))
    qda = add_unit(dma(vQD, dQKV, TQ + 2*u)); qdb = add_unit(dma(vQD, dQKV, TQ + 2*u + 1))
    su = add_unit(dma(vW1s, dW1, T1 + 2*u))
    pa = add_unit(dma(vW1p, dW1, T1 + 2*u)); pb = add_unit(dma(vW1p, dW1, T1 + 2*u + 1))
    end_slab()
    for q in range(4):
        s = 4 * u + q; f = (s == 0)
        slot('v', S[0], f, ((kva, q, 0), (kvb, q, 0)), Xf(s), False, name=f"g1k{s}")
        slot('v', S[1], f, ((kva, q, 512), (kvb, q, 512)), Xf(s), False)
        slot('v', S[2], False, ((qda, q, 512), (qdb, q, 512)), Xf(s), False)
        slot('v', S[3], f, ((qda, q, 0), (qdb, q, 0)), Xf(s), True)
        slot('v', S[4], False, ((su, q, 0), (su, q, 512)), Xf(s), True)
        slot('a', AA[0], False, ((pa, q, 0), (pb, q, 0)), Xf(s), True)
        slot('a', AA[1], False, ((pa, q, 512), (pb, q, 512)), Xf(s), True)
T0 = len(back)
PV, PK, PD, BH1 = S[1], S[1] + 8, S[2], S[0]
BH0 = PV
Facc = {0: ('v', S[4]), 1: ('a', AA[0]), 2: ('a', AA[1]), 3: ('a', AA[2]), 4: ('a', AA[3]), 5: ('v', S[0]), 6: ('v', S[1]), 7: ('v', S[2]), 8: ('v', S[4])}
gstart = {}
MF = "v_mfma_f32_32x32x16_bf16"
for gi, p in enumerate((1, 2, 3)):
    gstart[p] = len(back)
    for u in range(9):
        pa = add_unit(dma(vW1p, dW1, T1 + 2*u, p * 128)); pb = add_unit(dma(vW1p, dW1, T1 + 2*u + 1, p * 128))
        if u % 3 == 2: end_slab()
        for q in range(4):
            s = 4 * u + q
            for tt in range(2):
                k, b_ = Facc[1 + 2 * p + tt]
                slot(k, b_, False, ((pa, q, 512 * tt), (pb, q, 512 * tt)), Xf(s), True, name=f"g{p+1}k{s}t{tt}")
                if p == 1 and len(back) == T0 + args.kvslot:
                    KV0 = len(back)
                    for dst, a_, b2 in ((AA[4], PK, ('v', BH0)), (AA[5], PK, ('v', BH1)), (AA[6], PD, ('v', BH1)), (AA[7], PD, ('a', IDA))):
                        slot_raw(f"{MF} {tile('a', dst)}, {rs('v', a_, 4)}, {rs(b2[0], b2[1], 4)}, 0")
                        slot_raw(f"{MF} {tile('a', dst)}, {rs('v', a_+4, 4)}, {rs(b2[0], b2[1]+4, 4)}, {tile('a', dst)}")
G2S = len(back)
def Hf(T, u):
    if T == 7: return rs('v', S[2] + 4 * u, 4)
    if T == 8: return rs('v', S[2] + 8 + 4 * u, 4)
    return rs('a', H + 8 * T + 4 * u, 4)
PQ = S[3]; PQT = S[3] + 8; OT = S[3] + 12
LAND = X
LT = X + 64
JJ = X + 8
A0, A1 = X + 16, X + 28
N0, N1 = X + 48, X + 64 + 16
OO = X + 40
OA, OB, OC = 208, 224, 240
otile = {0: OA, 1: OB, 2: S[0], 3: S[1], 4: OC, 5: S[4]}
hfirst = {}
tile_done = {}
def w2unit(T, step): return add_unit(dma(vW2, dW2, T2[T], step * 128), after='t2')
def wounit(step): return add_unit(dma(vW2, dWO, sWO, step * 128))
def g2slots(un, c0, bf, first):
    for u in range(2):
        for tt in range(2):
            slot('v', otile[c0 + tt], first and u == 0, ((un, 2*u, 512*tt), (un, 2*u+1, 512*tt)), bf(u), True)
def attn_slots(step):
    un = wounit(step)
    g2slots(un, 2 * step, lambda u: rs('v', OO + 4 * u, 4), False)
    for tt in range(2):
        c = 2 * step + tt
        slot('v', otile[c], False, (('abs', WOT + c * 256), None), rs('v', OT, 4), True)
        tile_done[c] = len(back) - 1
for T in range(9):
    hfirst[T] = len(back)
    for step in range(2):
        g2slots(w2unit(T, step), 2 * step, lambda u: Hf(T, u), T == 0)
    if T % 3 == 2: end_slab()
free_tiles = []
NUM0 = None
for step in range(2, 9):
    if step >= 3:
        otile[2*step], otile[2*step+1] = (otile[2*step-6], otile[2*step-5]) if step >= 4 else (N0, N1)
        if step == 3: otile[6], otile[7] = X + 64, X + 80
    for T in range(9):
        g2slots(w2unit(T, step), 2 * step, lambda u: Hf(T, u), T == 0)
        if T == 4: end_slab()
        if step == 2 and T == 5:
            NUM0 = len(back)
            for dst, a_ in ((N0, A0), (N1, A1)):
                slot_raw(f"{MF} {tile('v', dst)}, {rs('v', a_, 4)}, {rs('v', PQ, 4)}, 0")
                slot_raw(f"{MF} {tile('v', dst)}, {rs('v', a_+4, 4)}, {rs('v', PQ+4, 4)}, {tile('v', dst)}")
                slot_raw(f"{MF} {tile('v', dst)}, {rs('v', a_+8, 4)}, {rs('v', PQT, 4)}, {tile('v', dst)}")
    if step == 2:
        ATT0 = len(back)
        end_slab()
        attn_slots(0); attn_slots(1)
    attn_slots(step)
    end_slab()
NS = len(back)

tasks = []
def task(name, ops, start=0, deadline=10**9, deps=(), prio=None):
    tasks.append(dict(name=name, ops=list(ops), start=start, deadline=deadline, deps=list(deps), pos=0, ready=0, prio=prio if prio is not None else deadline))
done_tasks = {}
DLY = lambda n: ('delay', n)
def ln_ops(s):
    o = []
    for half in range(2):
        t = TMP[4*half: 4*half+4]; x0 = X + 4*s + 2*half
        o += [f"v_lshlrev_b32 v{t[0]}, 16, v{x0}", f"v_and_b32 v{t[1]}, s{sMASK}, v{x0}",
              f"v_lshlrev_b32 v{t[2]}, 16, v{x0+1}", f"v_and_b32 v{t[3]}, s{sMASK}, v{x0+1}"]
        o += [f"v_fma_f32 v{r}, v{r}, v{vScale}, v{vShift}" for r in t]
        o += [f"v_cvt_pk_bf16_f32 v{x0}, v{t[0]}, v{t[1]}", f"v_cvt_pk_bf16_f32 v{x0+1}, v{t[2]}, v{t[3]}"]
    return o
for s in range(1, 36):
    task(f"ln{s}", ln_ops(s), start=max(0, 7*(s-1) - 3), deadline=7*s)
def phi_pair(src, p, dst, t):
    a, b = src + 2*p, src + 2*p + 1
    return [f"v_mul_f32 v{t[0]}, s{sLOG2E}, v{a}", f"v_mul_f32 v{t[1]}, s{sLOG2E}, v{b}",
            f"v_exp_f32 v{t[0]}, v{t[0]} clamp", f"v_exp_f32 v{t[1]}, v{t[1]} clamp",
            f"v_max_f32 v{a}, s{sEPS}, v{a}", f"v_max_f32 v{b}, s{sEPS}, v{b}",
            f"v_add_f32 v{t[0]}, v{t[0]}, v{a}", f"v_add_f32 v{t[1]}, v{t[1]}, v{b}",
            f"v_cvt_pk_bf16_f32 v{dst}, v{t[0]}, v{t[1]}"]
tA = TMP[0:4]; tB = TMP[4:8]; tC = TMP[8:13]
o = [f"v_cvt_pk_bf16_f32 v{PV+p}, v{S[1]+2*p}, v{S[1]+2*p+1}" for p in range(8)]
for p in range(8): o += phi_pair(S[0], p, PK + p, tA[2*(p & 1):])
for p in range(8):
    t = tA[2*(p & 1):]
    o += [f"v_cvt_pk_bf16_f32 v{BH1+p}, v{S[2]+2*p}, v{S[2]+2*p+1}"]
    o += phi_pair(S[2], p, PD + p, t)
    o += [f"v_cndmask_b32 v{BH1+p}, v{PV+p}, v{BH1+p}, {sp(mLT18)}", f"v_cndmask_b32 v{BH0+p}, v{PD+p}, v{PV+p}, {sp(mLT18)}"]
task("kvprep", o, start=T0 - 2, deadline=KV0)
o = []
for r in range(16):
    off = (r >> 2) * 1024 + (r & 3) * 4
    if r < 8: o.append(f"ds_add_f32 v{vImg}, a{AA[4]+r} offset:{off}")
    elif r < 10: o += [f"ds_add_f32 v{vImgA}, a{AA[4]+r} offset:{off}", f"ds_add_f32 v{vImgB}, a{AA[5]+r} offset:{off}"]
    else: o.append(f"ds_add_f32 v{vImg}, a{AA[5]+r} offset:{off}")
o += [f"ds_add_f32 v{vImg}, a{AA[6]+4+i} offset:{4096+4*i}" for i in range(4)]
pa_, pb_ = tB[0], tC[0]
assert pa_ % 2 == 0 and pb_ % 2 == 0
tx = tC[4]
o += [[f"s_lshl_b32 s{sA}, s{sWv}, 10", f"v_add_u32 v{tx}, s{sA}, v{vL16}"], DLY(3), ('xbar',),
      f"ds_read_b128 v[{pa_}:{pa_+3}], v{tx} offset:{IMG_A}", f"ds_read_b128 v[{pb_}:{pb_+3}], v{tx} offset:{IMG_B}", DLY(4)]
o += [f"v_add_f32 v{pa_+i}, v{pa_+i}, v{pb_+i}" for i in range(4)]
o += [f"buffer_store_dwordx4 v[{pa_}:{pa_+3}], v{vL16}, {srd(dWS)}, s{sKVPUB} offen sc1",
      f"ds_read_b128 v[{pb_}:{pb_+3}], v{vL16} offset:{IMG_B+4096}",
      f"v_and_b32 v{tx}, 32, v0", f"v_lshlrev_b32 v{tx}, 25, v{tx}", f"v_or_b32 v{tx}, v{tx}, v{vL16}",
      f"ds_read_b128 v[{pa_}:{pa_+3}], v{vL16} offset:{IMG_A+4096}", DLY(4)]
o += [f"v_add_f32 v{pa_+i}, v{pa_+i}, v{pb_+i}" for i in range(4)]
o += [f"buffer_store_dwordx4 v[{pa_}:{pa_+3}], v{tx}, {srd(dWS)}, s{sTLPUB} offen sc1", ('stamp',)]
task("kvpub", o, start=KV0 + 5, deadline=gstart[3], prio=KV0 + 1)
def bias(T, k, b_): return [f"ds_read_b128 {rs(k, b_+4*g, 4)}, v{vB1} offset:{(32*T + 8*g)*4}" for g in range(4)]
task("b34", bias(3, *Facc[3]) + bias(4, *Facc[4]), start=T0 - 30, deadline=T0 - 5)
task("b56", bias(5, *Facc[5]) + bias(6, *Facc[6]), start=KV0 + 7, deadline=gstart[2] - 4, prio=KV0)
task("b78", bias(7, *Facc[7]) + bias(8, *Facc[8]), start=KV0 + 9, deadline=gstart[3] - 4, deps=["act0"])
def act(T):
    k, b_ = Facc[T]; o = []
    for p in range(8):
        t = tA[2*(p & 1):]
        if k == 'a':
            o += [f"v_accvgpr_read_b32 v{t[0]}, a{b_+2*p}", f"v_accvgpr_read_b32 v{t[1]}, a{b_+2*p+1}"]; a, b = t[0], t[1]
        else: a, b = b_ + 2*p, b_ + 2*p + 1
        o += [f"v_mul_f32 v{a}, v{a}, abs(v{a})", f"v_mul_f32 v{b}, v{b}, abs(v{b})", f"v_cvt_pk_bf16_f32 v{t[0]}, v{a}, v{b}"]
        if T == 7: o += [f"v_pk_max_i16 v{S[2]+p}, v{t[0]}, 0"]
        elif T == 8: o += [f"v_pk_max_i16 v{S[2]+8+p}, v{t[0]}, 0"]
        else: o += [f"v_pk_max_i16 v{t[0]}, v{t[0]}, 0", f"v_accvgpr_write_b32 a{H+8*T+p}, v{t[0]}"]
    return o
chain = [(0, T0, gstart[3] - 12), (1, T0, hfirst[1]), (2, T0, hfirst[2]), (5, gstart[3] + 3, G2S), (6, gstart[3] + 3, G2S),
         (3, gstart[2] + 3, hfirst[3]), (4, gstart[2] + 3, hfirst[4]), (7, G2S + 3, hfirst[7]), (8, G2S + 3, hfirst[8])]
prev = "kvprep"
order = [0, 1, 2, 3, 5, 6, 4, 7, 8]
cd = {c[0]: c for c in chain}
dl = 10**9
dls = {}
for T in reversed(order):
    dl = min(dl, cd[T][2]); dls[T] = dl
for T in order:
    task(f"act{T}", act(T), start=cd[T][1], deadline=dls[T], deps=[prev]); prev = f"act{T}"
o = [f"s_add_u32 s{T2[i]}, s{sT2B}, {(i-1)*32*1152}" for i in range(1, 9)]
task("t2", o, start=T0 - 20, deadline=gstart[3] - 60, deps=["qkvdma"])
LO18, HI18, K1M = 0x3ffff, 0xfffc0000, 0x3ff0f
o = []
for m, lo, hi in ((mMIX, LO18, HI18), (mK1, K1M, K1M), (mMIX1, HI18, K1M), (mTL0, HI18, 0), (mTL1, K1M, 0)):
    o += [f"s_mov_b32 s{m}, {hex(lo)}", f"s_mov_b32 s{m+1}, {hex(hi)}"]
task("masks", o, start=T0, deadline=G2S + 40, deps=["qkvdma"])
KL = gstart[3] + args.kvload
o = [[f"s_lshl_b32 s{sB}, s{sJ}, 4", f"buffer_load_dword v{tx}, off, {srd(dDBG)}, s{sB} sc1"], DLY(30),
     [f"v_cmp_ne_u32 vcc, 16, v{tx}", "s_cbranch_vccnz K1_SPIN", "K1_SPIN_BACK:"]]
task("poll", o, start=KL - 36, deadline=KL, deps=["kvpub"], prio=KL - 36)
def kv_loads():
    o = []
    for i in range(16):
        if i % 4 == 0: o.append(f"s_add_u32 s{sC}, s{sKVLD}, {i*1024}")
        o.append(f"buffer_load_dwordx4 {rs('v', LAND+4*i, 4)}, v{vL16}, {srd(dWS)}, s{sC} offen offset:{(i%4)*1024} sc1")
    for i in range(8):
        if i % 4 == 0: o.append(f"s_add_u32 s{sC}, s{sTLLD}, {i*1024}")
        o.append(f"buffer_load_dwordx4 {rs('v', LT+4*i, 4)}, v{vL16}, {srd(dWS)}, s{sC} offen offset:{(i%4)*1024} sc1")
    return o
def kv_sums():
    o = []
    for i in range(1, 16): o += [f"v_add_f32 v{LAND+k}, v{LAND+k}, v{LAND+4*i+k}" for k in range(4)]
    for i in range(1, 8): o += [f"v_add_f32 v{LT+k}, v{LT+k}, v{LT+4*i+k}" for k in range(4)]
    o += [f"v_cmp_u_f32 vcc, v{LAND}, v{LAND+1}", f"v_cmp_u_f32 {sp(sE)}, v{LAND+2}, v{LAND+3}", f"v_cmp_u_f32 {sp(sA)}, v{LT}, v{LT+1}", f"v_cmp_u_f32 {sp(sC)}, v{LT+2}, v{LT+3}",
          f"s_or_b64 vcc, vcc, {sp(sE)}", f"s_or_b64 {sp(sA)}, {sp(sA)}, {sp(sC)}", f"s_or_b64 vcc, vcc, {sp(sA)}"]
    return o
o = []
li = 0
for t_ in kv_loads():
    if t_.startswith('buffer'):
        o.append(('notbefore', gstart[3] + 2 * li + 2)); li += 1
    o.append(t_)
    if t_.startswith('buffer'): o.append(DLY(1))
task("kvld", o, start=KL, deadline=G2S + 10, deps=["poll"], prio=KL)
o = [('afterbar',), f"s_lshl_b32 s{sA}, s{sWv}, 10", f"s_add_u32 m0, s{sA}, {WOT}", f"s_lshl_b32 s{sA}, s{sWv}, 8", f"s_add_u32 s{sA}, s{sA}, s{sWO}",
     f"s_add_u32 s{sA}, s{sA}, {32*1152}", f"buffer_load_dwordx4 v{vWOt}, {srd(dWO)}, s{sA} offen lds",
     f"s_mov_b32 m0, {WOT+4096}", f"s_add_u32 s{sA}, s{sWO}, {32*1152+1024}", f"buffer_load_dwordx4 v{vWOt}, {srd(dWO)}, s{sA} offen lds", ('cover',)]
task("wot", o, start=0, deadline=G2S, deps=["kvpub"], prio=0)
tasks[-1]['atomic'] = True
o = []
for p in range(8): o += phi_pair(S[3], p, PQ + p, tB[2*(p & 1):])
o += [f"v_accvgpr_read_b32 v{tB[i]}, a{AA[7]+12+i}" for i in range(4)]
o += [f"v_cvt_pk_bf16_f32 v{PQT}, v{tB[0]}, v{tB[1]}", f"v_cvt_pk_bf16_f32 v{PQT+1}, v{tB[2]}, v{tB[3]}",
      f"v_mov_b32 v{PQT+2}, 0", f"v_mov_b32 v{PQT+3}, 0", f"v_mov_b32 v{OT+2}, 0", f"v_mov_b32 v{OT+3}, 0"]
task("q", o, start=T0, deadline=NUM0, deps=["kvpub"], prio=NUM0 - 50)
o = [DLY(40)] + kv_sums()[:-7]
task("kvsum", o, start=0, deadline=NUM0 - 30, deps=["kvld"], prio=NUM0 - 60)
o = kv_sums()[-7:] + ["s_cbranch_scc1 K1_RETRY", "K1_RETRY_BACK:"]
task("kvchk", o, deadline=NUM0 - 28, deps=["kvsum"], prio=NUM0 - 60); tasks[-1]['atomic'] = True
o = [f"v_cvt_pk_bf16_f32 v{LAND+4}, v{LAND}, v{LAND+1}", f"v_cvt_pk_bf16_f32 v{LAND+5}, v{LAND+2}, v{LAND+3}",
     [f"s_lshr_b32 s{sA}, s{sWv}, 1", f"s_lshl_b32 s{sA}, s{sA}, 10", f"s_and_b32 s{sB}, s{sWv}, 1", f"s_lshl_b32 s{sB}, s{sB}, 3", f"s_add_u32 s{sA}, s{sA}, s{sB}",
     f"v_add_u32 v{tx}, s{sA}, v{vL16}"], f"ds_write_b64 v{tx}, v[{LAND+4}:{LAND+5}] offset:{FIN}"]
for k in range(4): o += [f"v_mov_b32 v{LT+4+k}, v{LT+k}"]
for k in range(4): o += [f"v_permlane32_swap_b32 v{LT+4+k}, v{LT+k}"]
for k in range(4): o += [f"v_add_f32 v{LT+k}, v{LT+k}, v{LT+4+k}"]
o += [('xbar',), f"ds_read_b128 {rs('v', JJ, 4)}, v{vL16} offset:{FIN}", f"ds_read_b128 {rs('v', JJ+4, 4)}, v{vL16} offset:{FIN+1024}"]
o += [f"v_cvt_pk_bf16_f32 v{LT+4}, v{LT}, v{LT+1}", f"v_cvt_pk_bf16_f32 v{LT+5}, v{LT+2}, v{LT+3}"]
for k in range(2):
    o += [f"v_cndmask_b32 v{A0+8+k}, 0, v{LT+4+k}, {sp(mTL0)}", f"v_cndmask_b32 v{A1+8+k}, 0, v{LT+4+k}, {sp(mTL1)}",
          f"v_mov_b32 v{A0+10+k}, 0", f"v_mov_b32 v{A1+10+k}, 0"]
o += [DLY(2)]
for p in range(8):
    if p < 4: o += [f"v_cndmask_b32 v{A0+p}, 0, v{JJ+p}, {sp(mLT18)}", f"v_cndmask_b32 v{A1+p}, v{JJ+p}, 0, {sp(mLT18)}"]
    elif p == 4: o += [f"v_cndmask_b32 v{A0+p}, 0, v{JJ+p}, {sp(mMIX)}", f"v_cndmask_b32 v{A1+p}, 0, v{JJ+p}, {sp(mMIX1)}"]
    else: o += [f"v_cndmask_b32 v{A0+p}, v{JJ+p}, 0, {sp(mLT18)}", f"v_cndmask_b32 v{A1+p}, 0, v{JJ+p}, {sp(mK1)}"]
task("kvfin", o, deadline=NUM0, deps=["kvchk", "masks"], prio=NUM0 - 60)
r1, r0, rm = N1 + 8, N1 + 9, N1 + 10
o = [f"v_permlane32_swap_b32 v{N1+8}, v{N1+9}", f"v_add_f32 v{r1}, s{sEPS}, v{r1}", f"v_add_f32 v{r0}, s{sEPS}, v{r0}",
     f"v_rcp_f32 v{r1}, v{r1}", f"v_rcp_f32 v{r0}, v{r0}", [f"s_mov_b32 s{sA}, -1", f"s_mov_b32 s{sB}, 0", f"v_cndmask_b32 v{rm}, v{r1}, v{r0}, {sp(sA)}"]]
for p in range(8):
    rr = r0 if p < 4 else (rm if p == 4 else r1)
    o += [f"v_mul_f32 v{N0+2*p}, v{N0+2*p}, v{rr}", f"v_mul_f32 v{N0+2*p+1}, v{N0+2*p+1}, v{rr}", f"v_cvt_pk_bf16_f32 v{OO+p}, v{N0+2*p}, v{N0+2*p+1}"]
o += [f"v_mul_f32 v{N1+k}, v{N1+k}, v{r1}" for k in range(4)]
o += [f"v_cvt_pk_bf16_f32 v{OT}, v{N1}, v{N1+1}", f"v_cvt_pk_bf16_f32 v{OT+1}, v{N1+2}, v{N1+3}"]
task("o", o, start=NUM0 + 8, deadline=ATT0, prio=NUM0)
prev = None
for step in range(9):
    o = [f"s_add_u32 s{sD}, s{sSTORE}, {step*4096}"]
    for tt in range(2):
        b_ = otile[2*step+tt]
        o += [f"v_cvt_pk_bf16_f32 v{b_+p}, v{b_+2*p}, v{b_+2*p+1}" for p in range(4)]
        o += [f"buffer_store_dwordx4 {rs('v', b_, 4)}, v{vStore}, {srd(dWS)}, s{sD} offen offset:{tt*2048} {args.stflags}"]
        o += [f"v_cvt_pk_bf16_f32 v{b_+p}, v{b_+2*p}, v{b_+2*p+1}" for p in range(4, 8)]
        o += [f"buffer_store_dwordx4 {rs('v', b_+4, 4)}, v{vStore}, {srd(dWS)}, s{sD} offen offset:{tt*2048+1024} {args.stflags}"]
    st = tile_done[2*step+1] + 3
    task(f"out{step}", o, start=st, deadline=st + 36, deps=[prev] if prev else []); prev = f"out{step}"

pos_free = [False] * RING
pos_owner = [None] * RING
next_unit = [0]
cover_vm = [0]
nbar = [0]
wot = dict(tok=None, vis=False)
for b_ in back:
    if b_['frag']:
        for f in b_['frag']:
            if f and f[0] != 'abs': f[0]['nread'] += 1
def can_issue():
    i = next_unit[0]
    if i >= len(units): return False
    u = units[i]
    if u['after'] and u['after'] not in done_tasks: return False
    return pos_free[i % RING]
def issue_dma():
    i = next_unit[0]; u = units[i]; pos = i % RING
    for t_ in u['dma'](pos): op = E(t_)
    u['tok'] = op.tok; pos_free[pos] = False; pos_owner[pos] = u; next_unit[0] += 1
    if i == 9 * 7 - 4: done_tasks['qkvdma'] = True
def barrier(vm=None, lg=None):
    P.wait(lg, vm); E("s_barrier"); nbar[0] += 1
    if wot['tok'] is not None and P.done_vm >= wot['tok']: wot['vis'] = True
    for pos in range(RING):
        u = pos_owner[pos]
        if u is not None and u['nread'] == 0 and u['last'] <= P.done_lgkm:
            pos_free[pos] = True; pos_owner[pos] = None

def dots(g):
    for i in range(4):
        for k in range(4):
            x = X + 16*g + 4*i + k
            E(f"v_dot2_f32_bf16 v{acc[k&1]}, v{x}, s{sD}, v{acc[k&1]}")
            E(f"v_dot2_f32_bf16 v{acc[2+(k&1)]}, v{x}, v{x}, v{acc[2+(k&1)]}")
for g in range(9):
    P.wait(vm=xtok[g])
    if g == 0: stamp_now()
    for i in range(4): E(f"ds_read_b128 {Xf(4*g+i)}, v{xr[i]} offset:{g*4096}")
    if g + XPRE < 9: x_block(g + XPRE)
    if g + XPRE == 8:
        E(f"buffer_store_dwordx4 v[{sn}:{sn+3}], v{vL16}, {srd(dWS)}, s{sKVPUB} offen sc1")
        sent_tok = E(f"buffer_store_dwordx4 v[{sn}:{sn+3}], v{lo16}, {srd(dWS)}, s{sTLPUB} offen sc1").tok
    if g > 0:
        dots(g - 1)
        for k in range(4): pos_free[4*(g-1) + k] = True
    if g == 1:
        E(f"v_lshlrev_b32 v{ta}, 16, v{tb1}"); E(f"v_and_b32 v{tb}, s{sMASK}, v{tb1}"); E(f"v_lshlrev_b32 v{tc}, 3, v0")
        E(f"ds_write_b64 v{tc}, v[{ta}:{tb}] offset:{B1TAB}")
    if g + XPRE >= 9:
        for _ in range(4):
            if can_issue() and next_unit[0] < 16: issue_dma()
stamp_now()
dots(8)
for k in range(4): pos_free[32 + k] = True
cur_slab = [-1]
frag_slots = [i for i, b_ in enumerate(back) if b_['frag']]
frag_no = {s_: k for k, s_ in enumerate(frag_slots)}
next_read = [0]
frag_tok = {}
def lds_addr(f):
    if f[0] == 'abs':
        assert wot['vis']; return f[1]
    u, q, off = f
    return QBASE + q * QSIZE + (u['idx'] % RING) * 1024 + off
def issue_reads():
    k = next_read[0]
    if k >= len(frag_slots): return 0
    b_ = back[frag_slots[k]]; n0 = len(P.ops)
    f0 = b_['frag'][0]
    if f0[0] != 'abs' and f0[0]['slab'] > cur_slab[0]:
        sl = f0[0]['slab']
        mine = [u for u in units if u['slab'] == sl]
        while mine[-1]['tok'] is None:
            assert can_issue(), ("ring deadlock", k, sl)
            issue_dma()
        barrier(vm=max(mine[-1]['tok'], cover_vm[0]), lg=(P.n_lgkm if sl == 0 else None)); cur_slab[0] = sl
        done_tasks['bar%d' % nbar[0]] = True
    a = 4 * (k % RINGF)
    for h_, f in enumerate(b_['frag']):
        if f is None: continue
        ad = lds_addr(f)
        op = E(f"ds_read_b64_tr_b16 a[{a+2*h_}:{a+2*h_+1}], v{vP[ad >> 16]} offset:{ad & 0xffff}")
        if f[0] != 'abs': f[0]['nread'] -= 1; f[0]['last'] = op.tok
    frag_tok[k] = P.n_lgkm
    next_read[0] += 1
    return len(P.ops) - n0
cover_vm[0] = sent_tok
s0, s1, q0, q1 = acc
E(f"v_add_f32 v{s0}, v{s0}, v{s1}"); E(f"v_add_f32 v{q0}, v{q0}, v{q1}")
E(f"v_mov_b32 v{s1}, v{s0}"); E(f"v_mov_b32 v{q1}, v{q0}")
E(f"v_permlane32_swap_b32 v{s0}, v{s1}"); E(f"v_permlane32_swap_b32 v{q0}, v{q1}")
E(f"v_add_f32 v{s0}, v{s0}, v{s1}"); E(f"v_add_f32 v{q0}, v{q0}, v{q1}")
E(f"v_mul_f32 v{s0}, 0x3ae38e39, v{s0}"); E(f"v_mul_f32 v{q0}, 0x3ae38e39, v{q0}")
E(f"v_fma_f32 v{q0}, -v{s0}, v{s0}, v{q0}"); E(f"v_max_f32 v{q0}, 0, v{q0}")
E(f"v_cvt_pk_bf16_f32 v{s1}, v{q0}, v{s0}")
E(f"v_lshlrev_b32 v{q0}, 16, v{s1}"); E(f"v_and_b32 v{s0}, s{sMASK}, v{s1}")
E(f"v_add_f32 v{q0}, 0x3727c5ac, v{q0}")
E(f"v_cvt_pk_bf16_f32 v{q0}, v{q0}, v{q0}"); E(f"v_lshlrev_b32 v{q0}, 16, v{q0}")
E(f"v_sqrt_f32 v{q0}, v{q0}")
E(f"v_cvt_pk_bf16_f32 v{q0}, v{q0}, v{q0}"); E(f"v_lshlrev_b32 v{q0}, 16, v{q0}")
E(f"v_rcp_f32 v{vScale}, v{q0}")
E(f"v_mul_f32 v{vShift}, v{s0}, v{vScale}"); E(f"v_sub_f32 v{vShift}, 0, v{vShift}")
for t_ in ln_ops(0): E(t_)
stamp_now()
issue_reads()
E(f"v_lshlrev_b32 v{TMP[8]}, 12, v0"); E(f"v_mov_b32 v{TMP[9]}, 1"); E(f"s_lshl_b32 s{sB}, s{sJ}, 4")
E(f"buffer_atomic_add v{TMP[9]}, v{TMP[8]}, {srd(dDBG)}, s{sB} offen sc1")
for _ in range(3): issue_reads()
for t_ in bias(0, *Facc[0]) + bias(1, *Facc[1]) + bias(2, *Facc[2]): E(t_)
for _ in range(RINGF - 1 - 4): issue_reads()
stamp_now()

def run_task(tk, m, budget, force=False):
    used = 0
    ops = tk['ops']
    while tk['pos'] < len(ops):
        o = ops[tk['pos']]
        if isinstance(o, tuple):
            if o[0] == 'delay':
                tk['ready'] = m + o[1]; tk['pos'] += 1
                if not force: return used
                continue
            if o[0] == 'notbefore':
                if m < o[1]:
                    assert not force, ("forced before notbefore", tk['name'])
                    return used
                tk['pos'] += 1; continue
            if o[0] == 'afterbar':
                if 'barseen' not in tk: tk['barseen'] = nbar[0]; tk['lgseen'] = P.n_lgkm
                if not (nbar[0] > tk['barseen'] + 1):
                    assert not force, ("forced before barrier", tk['name'])
                    return used
                tk['pos'] += 1; continue
            if o[0] == 'xbar':
                barrier(lg=tk.get('lastds')); used += 2; tk['pos'] += 1; continue
            if o[0] == 'cover':
                wot['tok'] = P.n_vm; tk['pos'] += 1; continue
            if o[0] == 'stamp':
                stamp_now(); tk['pos'] += 1; continue
        if not force and not tk.get('atomic') and used >= budget: return used
        for o1 in (o if isinstance(o, list) else [o]):
            op = E(o1); used += op.cost
            if op.kind == 'ds': tk['lastds'] = op.tok
        tk['pos'] += 1
    done_tasks[tk['name']] = True
    return used
def runnable(tk, m): return tk['name'] not in done_tasks and tk['start'] <= m and tk['ready'] <= m and all(d in done_tasks for d in tk['deps'])
def force(tk, m):
    if tk['name'] in done_tasks: return
    for d in tk['deps']:
        if d not in done_tasks:
            dt = [x for x in tasks if x['name'] == d]
            assert dt, ("cannot force dep", d, tk['name'])
            force(dt[0], m)
    assert tk['start'] <= m + 3, ("forced before start", tk['name'], m, tk['start'])
    n0 = len(P.ops); run_task(tk, m, 0, force=True)
    forced.append((tk['name'], m, len(P.ops) - n0))
forced = []
last_dma = -10
carry = 0.0
stamp_at = {T0, gstart[2], gstart[3], G2S, NUM0, ATT0, 84, 168} | {tile_done[2*s+1] + 1 for s in range(2, 8)}
for m, b_ in enumerate(back):
    for tk in sorted(tasks, key=lambda t: t['deadline']):
        if tk['deadline'] <= m: force(tk, m)
    n0 = len(P.ops)
    if m in stamp_at: stamp_now()
    if 'raw' in b_:
        E(b_['raw'], note=f"slot {m}")
    else:
        k = frag_no[m]; a = rs('a', 4 * (k % RINGF), 4); at = tile(*b_['acc'])
        A_, B_ = (a, b_['other']) if b_['w_is_a'] else (b_['other'], a)
        E(f"{MF} {at}, {A_}, {B_}, {'0' if b_['first'] else at}", note=f"slot {m}", extra_lg=frag_tok.get(k + 1))
        issue_reads()
    cur_unit = next((f[0]['idx'] for s_ in frag_slots[min(next_read[0], len(frag_slots)-1):] for f in back[s_]['frag'][:1] if f[0] != 'abs'), len(units))
    if m - last_dma >= args.gap and can_issue() and next_unit[0] <= cur_unit + args.lead:
        issue_dma(); last_dma = m
    used = sum(o.cost for o in P.ops[n0:]) - 1
    budget = args.budget + carry - used
    for tk in sorted(tasks, key=lambda t: t['prio']):
        if budget < 1: break
        if runnable(tk, m): budget -= run_task(tk, m, int(budget))
    carry = min(max(budget, -2.0), 0.9)
for tk in tasks: force(tk, NS)
stamp_now()
if args.stamps:
    P.raw("s_waitcnt vmcnt(0) lgkmcnt(0)")
    stamp_now(); P.raw(f"s_memrealtime {sp(sE)}"); P.raw("s_waitcnt lgkmcnt(0)"); flush_stamp()
    P.raw(f"v_writelane_b32 v{vStamp}, s96, 62"); P.raw(f"v_writelane_b32 v{vStamp}, s{sE}, 63")
    E(f"s_lshl_b32 s{sA}, s2, 10"); E(f"s_add_u32 s{sA}, s{sA}, {STAMP}"); E(f"v_lshlrev_b32 v{TMP[0]}, 2, v0")
    E(f"buffer_store_dword v{vStamp}, v{TMP[0]}, {srd(dWS)}, s{sA} offen")
P.raw("K1_END:"); P.raw("s_endpgm")
R_ = P.raw
R_("K1_SPIN:"); R_(f"s_mov_b32 s{sCNT}, 0")
R_("K1_SPIN_LOOP:"); R_("s_sleep 8"); R_(f"s_lshl_b32 s{sG}, s{sJ}, 4")
R_(f"buffer_load_dword v{tx}, off, {srd(dDBG)}, s{sG} sc1"); R_("s_waitcnt vmcnt(0)")
R_(f"v_cmp_ne_u32 vcc, 16, v{tx}"); R_(f"s_add_u32 s{sCNT}, s{sCNT}, 1"); R_("s_nop 4"); R_("s_cbranch_vccz K1_SPIN_BACK")
R_(f"s_cmp_lt_u32 s{sCNT}, 20000"); R_("s_cbranch_scc1 K1_SPIN_LOOP"); R_("s_branch K1_SPIN_BACK")
R_("K1_RETRY:"); R_(f"s_mov_b32 s{sCNT}, 0")
R_("K1_RETRY_LOOP:"); R_("s_sleep 8")
for t_ in kv_loads(): R_(t_)
R_("s_waitcnt vmcnt(0)")
R_(f"s_add_u32 s{sCNT}, s{sCNT}, 1")
for t_ in kv_sums(): R_(t_)
R_("s_cbranch_scc0 K1_RETRY_BACK")
R_(f"s_cmp_lt_u32 s{sCNT}, 2000"); R_("s_cbranch_scc1 K1_RETRY_LOOP"); R_("s_branch K1_RETRY_BACK")
nn = P.hazards()
k1 = P
sys.stderr.write(f"slots {NS} T0 {T0} KV0 {KV0} g {gstart} G2S {G2S} NUM0 {NUM0} ATT0 {ATT0} barriers {nbar[0]} ops {len(P.ops)} hazard nops {nn}\n")
sys.stderr.write("forced: " + " ".join(f"{n}@{m}:{c}" for n, m, c in forced if c) + "\n")

P = Prog(); E = P.emit
P.raw(".globl k2_kernel"); P.raw(".p2align 8"); P.raw(".type k2_kernel,@function"); P.raw("k2_kernel:")
E("s_cmp_ge_u32 s2, 576"); E("s_cbranch_scc1 K2_END")
E("s_load_dwordx2 s[8:9], s[0:1], 80"); E("s_load_dwordx2 s[12:13], s[0:1], 0"); E("s_load_dwordx2 s[16:17], s[0:1], 56"); E("s_load_dwordx2 s[20:21], s[0:1], 64")
E("s_lshl_b32 s3, s2, 12"); E("v_lshl_add_u32 v1, v0, 4, s3")
E(f"s_mov_b32 s10, {16*PSTRIDE}"); E("s_mov_b32 s11, 0x20000"); E(f"s_mov_b32 s14, {PSTRIDE}"); E("s_mov_b32 s15, 0x20000")
E(f"s_mov_b32 s18, {D*2}"); E("s_mov_b32 s19, 0x20000"); E(f"s_mov_b32 s22, {PSTRIDE}"); E("s_mov_b32 s23, 0x20000")
E("s_mul_hi_u32 s4, s2, 0x1c71c71d"); E("s_mul_i32 s5, s4, 9"); E("s_sub_u32 s5, s2, s5")
E("s_lshl_b32 s5, s5, 7"); E("v_lshrrev_b32 v2, 5, v0"); E("v_lshl_add_u32 v2, v2, 4, s5")
E("v_and_b32 v3, 31, v0"); E("v_mul_u32_u24 v3, 1152, v3"); E(f"s_mul_i32 s4, s4, {32*1152}"); E("v_add3_u32 v3, v3, v2, s4")
E("s_mov_b32 s6, 0xffff0000")
P.raw("s_waitcnt lgkmcnt(0)")
for j in range(16):
    if j: E(f"s_mov_b32 s7, {j*PSTRIDE}")
    E(f"buffer_load_dwordx4 v[{16+4*j}:{19+4*j}], v1, s[8:11], {'s7' if j else '0'} offen {args.ldflags}")
E("buffer_load_dwordx4 v[80:83], v3, s[12:15], 0 offen"); E("buffer_load_dwordx4 v[84:87], v2, s[16:19], 0 offen")
for j in range(16):
    for k in range(4):
        r = 16 + 4*j + k
        if j == 0:
            E(f"v_lshlrev_b32 v{4+2*k}, 16, v{r}"); E(f"v_and_b32 v{5+2*k}, s6, v{r}")
        else:
            E(f"v_lshlrev_b32 v12, 16, v{r}"); E(f"v_and_b32 v13, s6, v{r}")
            E(f"v_pk_add_f32 v[{4+2*k}:{5+2*k}], v[{4+2*k}:{5+2*k}], v[12:13]")
for i in range(4): E(f"v_permlane32_swap_b32 v{4+i}, v{8+i}")
for base in (80, 84):
    for k in range(4):
        E(f"v_lshlrev_b32 v12, 16, v{base+k}"); E(f"v_and_b32 v13, s6, v{base+k}")
        E(f"v_pk_add_f32 v[{4+2*k}:{5+2*k}], v[{4+2*k}:{5+2*k}], v[12:13]")
for k in range(4): E(f"v_cvt_pk_bf16_f32 v{16+k}, v{4+2*k}, v{5+2*k}")
E("buffer_store_dwordx4 v[16:19], v3, s[20:23], 0 offen")
P.raw("K2_END:"); P.raw("s_endpgm")
P.hazards()
k2 = P

def kd(name, vgpr, acc_off, sgpr):
    return f""".p2align 6
.amdhsa_kernel {name}
  .amdhsa_next_free_vgpr {vgpr}
  .amdhsa_next_free_sgpr {sgpr}
  .amdhsa_accum_offset {acc_off}
  .amdhsa_group_segment_fixed_size 0
  .amdhsa_kernarg_size 88
  .amdhsa_user_sgpr_count 2
  .amdhsa_user_sgpr_kernarg_segment_ptr 1
  .amdhsa_system_sgpr_workgroup_id_x 1
.end_amdhsa_kernel"""
hdr = open(f"cdna_kernels/{NAME}.s.ref").read().split("; Override")[0]
print(hdr + "; @launch kernel=k1_kernel grid=(256,1,1) block=(256,1,1) lds=163840")
if not args.k1only: print("; @launch kernel=k2_kernel grid=(576,1,1) block=(256,1,1) lds=0")
print('.amdgcn_target "amdgcn-amd-amdhsa--gfx950"\n.text')
print(k1.text()); print(k2.text())
print('.section .rodata,"a"')
print(kd("k1_kernel", 512, 256, 102)); print(kd("k2_kernel", 88, 88, 32))
```
